```python
import torch

def _softmax(x, axis=-1):
    return torch.softmax(x, dim=axis)
def _gelu(x):
    return torch.nn.functional.gelu(x, approximate="tanh")
def _silu(x):
    return torch.nn.functional.silu(x)
def _sigmoid(x):
    return torch.sigmoid(x)
def _layernorm(x, axis=-1, eps=1e-5):
    m = x.mean(dim=axis, keepdim=True)
    v = x.var(dim=axis, keepdim=True, unbiased=False)
    return (x - m) / torch.sqrt(v + eps)
def _scatter_add(tgt, idx, src, axis=0):
    return tgt.clone().index_add_(axis, idx, src)
def _segment_sum(src, seg, n):
    out = torch.zeros((n,) + src.shape[1:], dtype=src.dtype)
    return out.index_add_(0, seg, src)
def _pad(x, pw):
    flat = tuple(v for pair in reversed(pw) for v in pair)
    return torch.nn.functional.pad(x, flat)

kernel_name = 'recurrent_scan__sliding_block_cached__glu_gated_bilinear__decode'

def setup_inputs():

    _w = (lambda a: (lambda t: t.to(torch.bfloat16) if t.is_floating_point() else t)(torch.as_tensor(a)))
    def _A_setup():
        B, Sq, D = 8, 1, 512
        Hq, Hkv, Sk, Dh = 32, 8, 4096, 128
        assert Hq % Hkv == 0, (Hq, Hkv)
        return {
            "x": _w((lambda *s: torch.randn(*s, dtype=torch.bfloat16) * 0.05)(B, Sq, D)),
            "k_cache": _w((lambda *s: torch.randn(*s, dtype=torch.bfloat16) * 3.2)(B, Hkv, Sk, Dh)),
            "v_cache": _w((lambda *s: torch.randn(*s, dtype=torch.bfloat16) * 3.2)(B, Hkv, Sk, Dh)),
            "wq": _w((lambda *s: torch.randn(*s, dtype=torch.bfloat16) * 3.2)(D, Hq * Dh) * (D ** -0.5)),
            "wo": _w((lambda *s: torch.randn(*s, dtype=torch.bfloat16) * 3.2)(Hq * Dh, D) * ((Hq * Dh) ** -0.5)),
        }
    _A_in = _A_setup()

    def _B_setup():
        B, S, D, F = 8, 1, 512, 1792
        return {
            "x": _w((lambda *s: torch.randn(*s, dtype=torch.bfloat16) * 0.05)(B, S, D)),
            "w_gate": _w((lambda *s: torch.randn(*s, dtype=torch.bfloat16) * 0.4)(D, F) * (D ** -0.5)),
            "w_up": _w((lambda *s: torch.randn(*s, dtype=torch.bfloat16) * 0.4)(D, F) * (D ** -0.5)),
            "w_down": _w((lambda *s: torch.randn(*s, dtype=torch.bfloat16) * 0.4)(F, D) * (F ** -0.5)),
        }
    _B_in = _B_setup()

    return {
        "A_x": _A_in["x"],
        "A_k_cache": _A_in["k_cache"],
        "A_v_cache": _A_in["v_cache"],
        "A_wq": _A_in["wq"],
        "A_wo": _A_in["wo"],
        "B_x": _B_in["x"],
        "B_w_gate": _B_in["w_gate"],
        "B_w_up": _B_in["w_up"],
        "B_w_down": _B_in["w_down"],
    }

def reference(A_x, A_k_cache, A_v_cache, A_wq, A_wo, B_x, B_w_gate, B_w_up, B_w_down):
    def _A_ref(x, k_cache, v_cache, wq, wo):
        B, Sq, D = x.shape
        Hq, Dh = 32, 128
        Hkv, Sk = k_cache.shape[1], k_cache.shape[2]
        W = min(4096, max(256, Sk // 4))
        rep = Hq // Hkv
        q = (lambda x, *d: x.permute(*d))((x @ wq).reshape(B, Sq, Hq, Dh), 0, 2, 1, 3)
        k = (lambda x, n, axis: torch.repeat_interleave(x, n, dim=axis))(k_cache[:, :, Sk - W:, :], rep, axis=1)
        v = (lambda x, n, axis: torch.repeat_interleave(x, n, dim=axis))(v_cache[:, :, Sk - W:, :], rep, axis=1)
        scores = torch.einsum("bhqd,bhkd->bhqk", q, k) * (Dh ** -0.5)
        p = _softmax(scores, axis=-1)
        o = torch.einsum("bhqk,bhkd->bhqd", p, v)
        return (lambda x, *d: x.permute(*d))(o, 0, 2, 1, 3).reshape(B, Sq, Hq * Dh) @ wo

    def _B_ref(x, w_gate, w_up, w_down):
        g = torch.einsum("bsd,df->bsf", x, w_gate)
        u = torch.einsum("bsd,df->bsf", x, w_up)
        h = g * u
        return torch.einsum("bsf,fd->bsd", h, w_down)

    x = A_x
    xn = _layernorm(x, axis=-1)
    s = _A_ref(xn, A_k_cache, A_v_cache, A_wq, A_wo)
    g = _silu(_B_ref(xn, B_w_gate, B_w_up, B_w_down))
    return x + s * g
```

```python
import sys
NAME = "recurrent_scan__sliding_block_cached__glu_gated_bilinear__decode"
STAMPS = "--stamps" in sys.argv
OUT = [a for a in sys.argv[1:] if not a.startswith("--")][0]
WIN = 8
for a in sys.argv:
    if a.startswith("--win="): WIN = int(a[6:])
POLL_AT = 8 + 5
GATH_AT = 8 + 13
for a in sys.argv:
    if a.startswith("--pollat="): POLL_AT = int(a[9:])
    if a.startswith("--gathat="): GATH_AT = int(a[9:])

L = []
def A(s): L.append("    " + s)
def LBL(s): L.append(s + ":")
def C(s): L.append("    ; " + s)

P1OUT = 0x000000
OOUT  = 0x100000
SOUT  = 0x200000
STMP  = 0x300000
WS_BYTES = 268435456
OOB = 0x40000000
L_XN = 0
L_R1 = 8192
L_MX = 24576
L_LS = 24832
L_OR = 25600
L_R3 = 33792
LDS_BYTES = 50176
SPIN = 20000

vm_issued = 0
def VM(s):
    global vm_issued
    A(s); vm_issued += 1
    return vm_issued - 1
def WAITVM(idx):
    n = vm_issued - 1 - idx
    assert n >= 0
    A(f"s_waitcnt vmcnt({min(n,63)})")

sW = 2
sWAVE = 3
SRD_X, SRD_K, SRD_V, SRD_W1, SRD_W3, SRD_WS, SRD_DBG, SRD_OUT = 40, 44, 48, 52, 56, 60, 64, 68
sSELLO, sSELHI = 72, 73
sW1OFF, sW1STR = 74, 75
sP1ST = 76
sKOFF = 77
sW3OFF = 78
sROLE = 79
sP3ST = 80
sT0, sT1, sT2, sT3, sT4, sT5 = 81, 82, 83, 84, 85, 86
sQG = 87
sHG = 88
sOG = 89
sCNT = 90
sLOG2E = 91
sOST = 92
sSTAMP = 94
sEX = 96
vTID, vLANE, vG, vC = 0, 1, 2, 3
vW = 16; vV = 48; vT = 112; vACC = 144; vQ = 176; vS = 192; vP = 208; vH = 216
vXF = 248
def srd(n): return f"s[{n}:{n+3}]"
def vr(b, n=4): return f"v[{b}:{b+n-1}]"
def ar(b, n=4): return f"a[{b}:{b+n-1}]"

stamp_i = 0
def STAMP():
    global stamp_i
    if not STAMPS: return
    A(f"s_memrealtime s[{sSTAMP}:{sSTAMP+1}]")
    A("s_waitcnt lgkmcnt(0)")
    A(f"v_mov_b32 v14, s{sSTAMP}"); A(f"v_mov_b32 v15, s{sSTAMP+1}")
    VM(f"buffer_store_dwordx2 v[14:15], v13, {srd(SRD_WS)}, 0 offen offset:{stamp_i*8}")
    stamp_i += 1

def mk_srd(n, lo, size):
    A(f"s_mov_b32 s{n}, s{lo}"); A(f"s_mov_b32 s{n+1}, s{lo+1}")
    A(f"s_mov_b32 s{n+2}, {size}"); A(f"s_mov_b32 s{n+3}, 0x00020000")

def perms(src, dst):
    for dd in range(4):
        for e in range(2):
            i = 2*dd + e
            for m in range(4):
                sel = sSELHI if e else sSELLO
                A(f"v_perm_b32 v{dst+4*i+m}, v{src+4*(2*m+1)+dd}, v{src+4*(2*m)+dd}, s{sel}")

def dpp_add(d, s0, s1, ctrl):
    A(f"v_add_f32_dpp v{d}, v{s0}, v{s1} {ctrl} row_mask:0xf bank_mask:0xf")
def dpp_op(op, d, s0, s1, ctrl):
    A(f"{op}_dpp v{d}, v{s0}, v{s1} {ctrl} row_mask:0xf bank_mask:0xf")

hdr = f"""; fused decode kernel: LN -> (q,gate,up) -> windowed GQA attention -> wo / down -> epilogue, one persistent launch
; @launch grid=(256,1,1) block=(256,1,1) lds={LDS_BYTES}
.amdgcn_target "amdgcn-amd-amdhsa--gfx950"
.text
.globl {NAME}_kernel
.p2align 8
.type {NAME}_kernel,@function
{NAME}_kernel:"""

A(f"s_cmp_ge_u32 s{sW}, 256"); A("s_cbranch_scc1 L_end")
A("s_load_dwordx16 s[16:31], s[0:1], 0")
A("s_load_dwordx8 s[32:39], s[0:1], 64")
A(f"v_lshrrev_b32 v4, 6, v0")
A(f"v_and_b32 v{vLANE}, 63, v0")
A(f"v_readfirstlane_b32 s{sWAVE}, v4")
A(f"v_lshrrev_b32 v{vG}, 4, v{vLANE}")
A(f"v_and_b32 v{vC}, 15, v{vLANE}")
A(f"s_mov_b32 s{sSELLO}, 0x05040100"); A(f"s_mov_b32 s{sSELHI}, 0x07060302")
A(f"s_mov_b32 s{sLOG2E}, 0x3fb8aa3b")
A("s_waitcnt lgkmcnt(0)")
mk_srd(SRD_X, 16, 8192); mk_srd(SRD_K, 18, 0x4000000); mk_srd(SRD_V, 20, 0x4000000)
mk_srd(SRD_WS, 38, WS_BYTES); mk_srd(SRD_DBG, 36, 256); mk_srd(SRD_OUT, 34, 8192)
C("---- P1 role ----")
A(f"s_mov_b32 s{SRD_W1}, s22"); A(f"s_mov_b32 s{SRD_W1+1}, s23"); A(f"s_mov_b32 s{SRD_W1+2}, 0x400000"); A(f"s_mov_b32 s{SRD_W1+3}, 0x00020000")
A(f"s_mov_b32 s{sW1STR}, 8192")
A(f"s_mov_b32 s{sT0}, s{sW}")
A(f"s_mov_b32 s{sT1}, 0")
A(f"s_cmp_lt_u32 s{sW}, 128"); A("s_cbranch_scc1 L_p1sel")
A(f"s_mov_b32 s{SRD_W1}, s28"); A(f"s_mov_b32 s{SRD_W1+1}, s29"); A(f"s_mov_b32 s{SRD_W1+2}, 1835008")
A(f"s_mov_b32 s{sW1STR}, 3584")
A(f"s_sub_u32 s{sT0}, s{sW}, 128"); A(f"s_mov_b32 s{sT1}, 4096")
A(f"s_cmp_lt_u32 s{sW}, 184"); A("s_cbranch_scc1 L_p1sel")
A(f"s_mov_b32 s{SRD_W1}, s30"); A(f"s_mov_b32 s{SRD_W1+1}, s31")
A(f"s_sub_u32 s{sT0}, s{sW}, 184"); A(f"s_mov_b32 s{sT1}, 5888")
LBL("L_p1sel")
A(f"s_lshr_b32 s{sT2}, s{sT0}, 2")
A(f"s_and_b32 s{sT3}, s{sT0}, 3")
A(f"s_lshl_b32 s{sT4}, s{sT3}, 7"); A(f"s_lshl_b32 s{sT5}, s{sWAVE}, 5"); A(f"s_add_u32 s{sT4}, s{sT4}, s{sT5}")
A(f"s_mul_i32 s{sW1OFF}, s{sT4}, s{sW1STR}")
A(f"s_lshl_b32 s{sT5}, s{sT2}, 8"); A(f"s_add_u32 s{sW1OFF}, s{sW1OFF}, s{sT5}")
A(f"s_lshl_b32 s93, s{sT4}, 1")
A(f"s_mul_i32 s{sP1ST}, s{sT3}, {8*7680}"); A(f"s_add_u32 s{sP1ST}, s{sP1ST}, s{sT1}")
A(f"s_lshl_b32 s{sT5}, s{sT2}, 7"); A(f"s_add_u32 s{sP1ST}, s{sP1ST}, s{sT5}"); A(f"s_lshl_b32 s{sP1ST}, s{sP1ST}, 2")
A(f"s_cmp_lt_u32 s{sW}, 240")
A(f"s_cselect_b32 s{sW1OFF}, s{sW1OFF}, {OOB}")
A(f"s_cselect_b32 s{sP1ST}, s{sP1ST}, {OOB}")
C("---- attention offsets ----")
A(f"s_lshr_b32 s{sKOFF}, s{sW}, 2"); A(f"s_lshl_b32 s{sKOFF}, s{sKOFF}, 20"); A(f"s_add_u32 s{sKOFF}, s{sKOFF}, 786432")
A(f"s_and_b32 s{sT0}, s{sW}, 3"); A(f"s_lshl_b32 s{sT0}, s{sT0}, 16"); A(f"s_add_u32 s{sKOFF}, s{sKOFF}, s{sT0}")
A(f"s_lshl_b32 s{sT0}, s{sWAVE}, 14"); A(f"s_add_u32 s{sKOFF}, s{sKOFF}, s{sT0}")
A(f"s_lshl_b32 s{sOST}, s{sW}, 12"); A(f"s_add_u32 s{sOST}, s{sOST}, {OOUT}")
A(f"s_lshr_b32 s{sT0}, s{sW}, 5"); A(f"s_mul_i32 s{sQG}, s{sT0}, 7680")
A(f"s_lshr_b32 s{sT0}, s{sW}, 2"); A(f"s_and_b32 s{sT0}, s{sT0}, 7"); A(f"s_lshl_b32 s{sT0}, s{sT0}, 9")
A(f"s_add_u32 s{sQG}, s{sQG}, s{sT0}"); A(f"s_lshl_b32 s{sQG}, s{sQG}, 2")
C("---- P3 role: j = 255-w ; j<128 wo(h=j>>2,cg=j&3) ; j<184 down(rb=(j-128)>>2) ----")
A(f"s_sub_u32 s{sT0}, 255, s{sW}")
A(f"s_mov_b32 s{SRD_W3}, s24"); A(f"s_mov_b32 s{SRD_W3+1}, s25"); A(f"s_mov_b32 s{SRD_W3+2}, 0x400000"); A(f"s_mov_b32 s{SRD_W3+3}, 0x00020000")
A(f"s_mov_b32 s{sROLE}, 1")
A(f"s_mov_b32 s{sT1}, s{sT0}")
A(f"s_cmp_lt_u32 s{sT0}, 128"); A("s_cbranch_scc1 L_p3sel")
A(f"s_mov_b32 s{SRD_W3}, s32"); A(f"s_mov_b32 s{SRD_W3+1}, s33"); A(f"s_mov_b32 s{SRD_W3+2}, 1835008")
A(f"s_mov_b32 s{sROLE}, 2")
A(f"s_sub_u32 s{sT1}, s{sT0}, 128")
A(f"s_cmp_lt_u32 s{sT0}, 184"); A("s_cbranch_scc1 L_p3sel")
A(f"s_mov_b32 s{sROLE}, 0")
LBL("L_p3sel")
A(f"s_lshr_b32 s{sT2}, s{sT1}, 2")
A(f"s_and_b32 s{sT3}, s{sT1}, 3")
A(f"s_lshl_b32 s{sT4}, s{sT2}, 7"); A(f"s_lshl_b32 s{sT5}, s{sWAVE}, 5"); A(f"s_add_u32 s{sT4}, s{sT4}, s{sT5}")
A(f"s_lshl_b32 s{sW3OFF}, s{sT4}, 10"); A(f"s_lshl_b32 s{sT5}, s{sT3}, 8"); A(f"s_add_u32 s{sW3OFF}, s{sW3OFF}, s{sT5}")
A(f"s_lshr_b32 s{sT5}, s{sT0}, 2"); A(f"s_lshl_b32 s{sP3ST}, s{sT5}, 14"); A(f"s_lshl_b32 s{sT5}, s{sT3}, 9")
A(f"s_add_u32 s{sP3ST}, s{sP3ST}, s{sT5}"); A(f"s_add_u32 s{sP3ST}, s{sP3ST}, {SOUT}")
A(f"s_add_u32 s{sHG}, s{sT4}, 4096"); A(f"s_lshl_b32 s{sHG}, s{sHG}, 2")
A(f"s_lshr_b32 s{sT5}, s{sT2}, 2"); A(f"s_lshl_b32 s{sOG}, s{sT5}, 14")
A(f"s_and_b32 s{sT5}, s{sT2}, 3"); A(f"s_lshl_b32 s{sT5}, s{sT5}, 9"); A(f"s_add_u32 s{sOG}, s{sOG}, s{sT5}")
A(f"s_lshl_b32 s{sT5}, s{sWAVE}, 7"); A(f"s_add_u32 s{sOG}, s{sOG}, s{sT5}"); A(f"s_add_u32 s{sOG}, s{sOG}, {OOUT}")
A(f"s_lshr_b32 s{sT5}, s{sT2}, 2"); A(f"s_lshl_b32 s98, s{sT5}, 14")
A(f"s_and_b32 s{sT5}, s{sT2}, 3"); A(f"s_lshl_b32 s{sT5}, s{sT5}, 3"); A(f"s_add_u32 s98, s98, s{sT5}"); A(f"s_add_u32 s98, s98, {OOUT+2048}")
A(f"s_cmp_eq_u32 s{sROLE}, 0")
A(f"s_cselect_b32 s{sW3OFF}, {OOB}, s{sW3OFF}")
A(f"s_cselect_b32 s{sP3ST}, {OOB}, s{sP3ST}")
A(f"s_cmp_eq_u32 s{sROLE}, 2")
A(f"s_cselect_b32 s{sHG}, s{sHG}, {OOB}")
C("---- per-lane offsets ----")
A("v_lshrrev_b32 v5, 5, v0"); A("v_and_b32 v6, 31, v0"); A("v_lshlrev_b32 v6, 4, v6")
A(f"v_mul_u32_u24 v4, {7680*4}, v5"); A("v_add_u32 v4, v4, v6")
A("v_lshlrev_b32 v5, 11, v5"); A("v_add_u32 v5, v5, v6")
A("v_lshlrev_b32 v6, 4, v0"); A(f"v_mov_b32 v7, {OOB}")
A("v_cmp_gt_u32 vcc, 130, v0"); A("s_nop 1"); A("v_cndmask_b32 v6, v7, v6, vcc")
if STAMPS:
    A(f"s_lshl_b32 s{sT0}, s{sW}, 10"); A(f"s_lshl_b32 s{sT1}, s{sWAVE}, 8"); A(f"s_add_u32 s{sT0}, s{sT0}, s{sT1}"); A(f"s_add_u32 s{sT0}, s{sT0}, {STMP}")
    A(f"v_mov_b32 v13, s{sT0}"); A(f"v_mov_b32 v12, {OOB}")
    A(f"v_cmp_eq_u32 vcc, 0, v{vLANE}"); A("s_nop 1"); A("v_cndmask_b32 v13, v12, v13, vcc")
STAMP()
C("---- clears ----")
for r in range(8, 12): A(f"v_mov_b32 v{r}, -1")
VM(f"buffer_store_dwordx4 v[8:11], v4, {srd(SRD_WS)}, s{sP1ST} offen sc1")
VM(f"buffer_store_dwordx4 v[8:11], v5, {srd(SRD_WS)}, s{sP3ST} offen sc1")
iCLR = VM(f"buffer_store_dwordx4 v[8:11], v6, {srd(SRD_WS)}, s{sOST} offen sc1")
C("---- x loads ----")
A("v_lshlrev_b32 v7, 5, v0")
VM(f"buffer_load_dwordx4 {vr(vT)}, v7, {srd(SRD_X)}, 0 offen")
iX = VM(f"buffer_load_dwordx4 {vr(vT+4)}, v7, {srd(SRD_X)}, 0 offen offset:16")
C("---- stream address regs ----")
A(f"v_lshlrev_b32 v8, 3, v{vG}"); A(f"v_mul_lo_u32 v8, v8, s{sW1STR}"); A(f"v_lshlrev_b32 v9, 4, v{vC}"); A("v_add_u32 v8, v8, v9")
A(f"v_lshlrev_b32 v9, 8, v{vC}"); A(f"v_lshl_add_u32 v9, v{vG}, 4, v9")
A(f"v_lshlrev_b32 v10, 10, v{vG}"); A(f"v_lshl_add_u32 v10, v{vC}, 4, v10")
A(f"s_cmp_eq_u32 s{sROLE}, 2"); A(f"s_cselect_b32 s{sT0}, 13, 11")
A(f"v_lshlrev_b32 v11, s{sT0}, v{vG}"); A(f"v_lshl_add_u32 v11, v{vC}, 4, v11")

stream = []
def mkW(j):
    def f():
        if j == 0: A(f"s_mov_b32 s{sT5}, s{sW1OFF}")
        else: A(f"s_add_u32 s{sT5}, s{sT5}, s{sW1STR}")
        return VM(f"buffer_load_dwordx4 {vr(vW+4*j)}, v8, {srd(SRD_W1)}, s{sT5} offen nt")
    return f
def mkK(n):
    kt, kk = n >> 2, n & 3
    def f():
        if kk == 0: A(f"s_add_u32 s{sT4}, s{sKOFF}, {kt*4096}")
        return VM(f"buffer_load_dwordx4 {ar(4*n)}, v9, {srd(SRD_K)}, s{sT4} offen offset:{kk*64} nt")
    return f
def mkV(n):
    u, j = n >> 3, n & 7
    row = 32*u + 16*(j >> 2) + (j & 3)
    def f():
        if (j & 3) == 0: A(f"s_add_u32 s{sT3}, s{sKOFF}, {(32*u + 16*(j>>2))*256}")
        return VM(f"buffer_load_dwordx4 {vr(vV+4*n)}, v10, {srd(SRD_V)}, s{sT3} offen offset:{(j&3)*256} nt")
    return f
def mkP(j):
    def f():
        A(f"s_cmp_eq_u32 s{sROLE}, 2")
        A(f"s_cselect_b32 s{sT2}, {j}, {(8*(j&3)+(j>>2))}")
        A(f"s_lshl_b32 s{sT2}, s{sT2}, 10")
        A(f"s_add_u32 s{sT2}, s{sT2}, s{sW3OFF}")
        return VM(f"buffer_load_dwordx4 {vr(vW+4*j)}, v11, {srd(SRD_W3)}, s{sT2} offen nt")
    return f
for j in range(8): stream.append(mkW(j))
for n in range(16): stream.append(mkK(n))
for n in range(16): stream.append(mkV(n))
for j in range(8): stream.append(mkP(j))
sidx = []
def issue_until(n):
    while len(sidx) < min(n, len(stream)):
        sidx.append(stream[len(sidx)]())
def topup(landed, win=None):
    WAITVM(sidx[landed]); issue_until(landed + 1 + (win or WIN))

issue_until(16)
C("---- flag after clears ----")
WAITVM(iCLR)
A("s_barrier")
A(f"s_cmp_lg_u32 s{sWAVE}, 0"); A("s_cbranch_scc1 L_noflag")
A(f"s_and_b32 s{sT0}, s{sW}, 63"); A(f"s_lshl_b32 s{sT0}, s{sT0}, 2")
A(f"v_mov_b32 v14, s{sT0}"); A("v_mov_b32 v15, 1")
A("s_mov_b64 exec, 1")
A(f"buffer_atomic_add v15, v14, {srd(SRD_DBG)}, 0 offen sc1")
A("s_mov_b64 exec, -1")
LBL("L_noflag")
C("---- layernorm ----")
WAITVM(iX)
xf = vT + 8
for d in range(8):
    A(f"v_lshlrev_b32 v{xf+2*d}, 16, v{vT+d}")
    A(f"v_and_b32 v{xf+2*d+1}, 0xffff0000, v{vT+d}")
def red32(v, t):
    A("s_nop 1")
    dpp_add(v, v, v, "quad_perm:[1,0,3,2]"); A("s_nop 1")
    dpp_add(v, v, v, "quad_perm:[2,3,0,1]"); A("s_nop 1")
    dpp_add(v, v, v, "row_half_mirror"); A("s_nop 1")
    dpp_add(v, v, v, "row_mirror")
    A(f"ds_swizzle_b32 v{t}, v{v} offset:0x401F")
    A("s_waitcnt lgkmcnt(0)")
    A(f"v_add_f32 v{v}, v{v}, v{t}")
t0 = vT + 24
A(f"v_add_f32 v{t0}, v{xf}, v{xf+1}")
for k in range(2, 16): A(f"v_add_f32 v{t0}, v{t0}, v{xf+k}")
red32(t0, t0+1)
A(f"v_mul_f32 v{t0}, 0x3b000000, v{t0}")
A(f"v_mov_b32 v{t0+2}, 0")
for k in range(16):
    A(f"v_sub_f32 v{t0+3}, v{xf+k}, v{t0}")
    A(f"v_fmac_f32 v{t0+2}, v{t0+3}, v{t0+3}")
red32(t0+2, t0+1)
A(f"v_mul_f32 v{t0+2}, 0x3b000000, v{t0+2}")
A(f"v_cvt_pk_bf16_f32 v{t0+3}, v{t0}, v{t0+2}")
A(f"v_lshlrev_b32 v{t0}, 16, v{t0+3}")
A(f"v_and_b32 v{t0+2}, 0xffff0000, v{t0+3}")
A(f"v_add_f32 v{t0+2}, 0x3727c5ac, v{t0+2}")
A(f"v_cvt_pk_bf16_f32 v{t0+2}, v{t0+2}, v{t0+2}")
A(f"v_lshlrev_b32 v{t0+2}, 16, v{t0+2}")
A(f"v_sqrt_f32 v{t0+2}, v{t0+2}")
A("s_nop 0")
A(f"v_cvt_pk_bf16_f32 v{t0+2}, v{t0+2}, v{t0+2}")
A(f"v_lshlrev_b32 v{t0+2}, 16, v{t0+2}")
A(f"v_rcp_f32 v{t0+3}, v{t0+2}")
for k in range(16): A(f"v_sub_f32 v{xf+k}, v{xf+k}, v{t0}")
for d in range(8):
    A(f"v_cvt_pk_bf16_f32 v{vT+d}, v{xf+2*d}, v{xf+2*d+1}")
for d in range(8):
    A(f"v_lshlrev_b32 v{xf+2*d}, 16, v{vT+d}")
    A(f"v_and_b32 v{xf+2*d+1}, 0xffff0000, v{vT+d}")
for k in range(16):
    A(f"v_mul_f32 v{t0+4}, v{xf+k}, v{t0+3}")
    A(f"v_fma_f32 v{t0+5}, -v{t0+4}, v{t0+2}, v{xf+k}")
    A(f"v_fma_f32 v{xf+k}, v{t0+5}, v{t0+3}, v{t0+4}")
for d in range(8):
    A(f"v_cvt_pk_bf16_f32 v{vT+d}, v{xf+2*d}, v{xf+2*d+1}")
A(f"ds_write_b128 v7, {vr(vT)} offset:{L_XN}")
A(f"ds_write_b128 v7, {vr(vT+4)} offset:{L_XN+16}")
A("s_waitcnt lgkmcnt(0)")
A("s_barrier")
A(f"v_and_b32 v12, 7, v{vC}"); A("v_lshlrev_b32 v12, 10, v12"); A(f"v_lshl_add_u32 v12, v{vG}, 4, v12"); A("v_add_u32 v12, s93, v12")
A(f"ds_read_b128 {vr(vXF)}, v12 offset:{L_XN}")
STAMP()
C("---- P1 compute ----")
WAITVM(sidx[7])
perms(vW, vT)
A("s_waitcnt lgkmcnt(0)")
A("s_nop 1")
for i in range(8):
    A(f"v_mfma_f32_16x16x32_bf16 {vr(vACC+4*i)}, {vr(vT+4*i)}, {vr(vXF)}, 0")
A(f"v_and_b32 v12, 7, v{vC}"); A("v_lshlrev_b32 v12, 9, v12"); A(f"v_lshl_add_u32 v12, v{vG}, 7, v12")
A(f"s_lshl_b32 s{sT0}, s{sWAVE}, 12"); A(f"v_add_u32 v12, s{sT0}, v12")
A(f"v_cmp_gt_u32 vcc, 8, v{vC}")
A("s_nop 4")
A(f"s_and_saveexec_b64 s[{sEX}:{sEX+1}], vcc")
for i in range(8):
    A(f"ds_write_b128 v12, {vr(vACC+4*i)} offset:{L_R1+16*i}")
A(f"s_mov_b64 exec, s[{sEX}:{sEX+1}]")
A("s_waitcnt lgkmcnt(0)")
A("s_barrier")
A("v_lshrrev_b32 v12, 5, v0"); A("v_lshlrev_b32 v12, 9, v12")
A("v_bfe_u32 v14, v0, 3, 2"); A("v_lshl_add_u32 v12, v14, 7, v12")
A("v_and_b32 v14, 1, v0"); A("v_lshl_add_u32 v12, v14, 6, v12")
A("v_bfe_u32 v14, v0, 1, 2"); A("v_lshl_add_u32 v12, v14, 2, v12")
A(f"v_add_u32 v12, {L_R1}, v12")
for w in range(4):
    if w: A("v_add_u32 v12, 0x1000, v12")
    A(f"ds_read2_b32 v[{vT+4*w}:{vT+4*w+1}], v12 offset0:0 offset1:4")
    A(f"ds_read2_b32 v[{vT+4*w+2}:{vT+4*w+3}], v12 offset0:8 offset1:12")
A("s_waitcnt lgkmcnt(0)")
for e in range(4):
    A(f"v_add_f32 v{vT+e}, v{vT+e}, v{vT+4+e}")
    A(f"v_add_f32 v{vT+8+e}, v{vT+8+e}, v{vT+12+e}")
for e in range(4):
    A(f"v_add_f32 v{vT+e}, v{vT+e}, v{vT+8+e}")
for e in range(4):
    A(f"v_min_u32 v{vT+e}, -2, v{vT+e}")
VM(f"buffer_store_dwordx4 {vr(vT)}, v4, {srd(SRD_WS)}, s{sP1ST} offen sc1")
STAMP()
C("---- paced stream, flags poll, gathers ----")
A(f"v_lshrrev_b32 v12, 2, v{vC}"); A(f"v_mul_u32_u24 v12, {8*7680*4}, v12")
A(f"v_and_b32 v14, 3, v{vC}"); A("v_lshl_add_u32 v12, v14, 9, v12"); A(f"v_lshl_add_u32 v12, v{vG}, 5, v12")
A(f"v_and_b32 v14, 7, v{vC}"); A(f"v_mul_u32_u24 v14, {7680*4}, v14")
A(f"v_lshrrev_b32 v15, 3, v{vC}"); A(f"v_mul_u32_u24 v15, {1792*4}, v15"); A("v_add_u32 v14, v14, v15"); A(f"v_lshl_add_u32 v14, v{vG}, 5, v14")
A(f"v_mov_b32 v252, v14")
A(f"v_lshlrev_b32 v253, 2, v{vLANE}")
def q_gather():
    r = None
    for kk in range(4):
        VM(f"buffer_load_dwordx4 {vr(vT+8*kk)}, v12, {srd(SRD_WS)}, s{sQG} offen offset:{kk*128} sc1")
        r = VM(f"buffer_load_dwordx4 {vr(vT+8*kk+4)}, v12, {srd(SRD_WS)}, s{sQG} offen offset:{kk*128+16} sc1")
    return r
def h_gather():
    r = None
    for ks in range(4):
        A(f"s_add_u32 s{sT1}, s{sHG}, {ks*8*7680*4}")
        VM(f"buffer_load_dwordx4 {vr(vH+8*ks)}, v252, {srd(SRD_WS)}, s{sT1} offen sc1")
        r = VM(f"buffer_load_dwordx4 {vr(vH+8*ks+4)}, v252, {srd(SRD_WS)}, s{sT1} offen offset:16 sc1")
    return r
def umax_chain(dst, regs):
    A(f"v_max3_u32 v{dst}, v{regs[0]}, v{regs[1]}, v{regs[2]}")
    k = 3
    while k + 1 < len(regs):
        A(f"v_max3_u32 v{dst}, v{dst}, v{regs[k]}, v{regs[k+1]}"); k += 2
    if k < len(regs): A(f"v_max_u32 v{dst}, v{dst}, v{regs[k]}")
iPOLL = None; iG = None
QK_AT = 24 + 1
for idx in range(8, QK_AT + 1):
    topup(idx)
    if idx == POLL_AT:
        iPOLL = VM(f"buffer_load_dword v254, v253, {srd(SRD_DBG)}, 0 offen sc1")
    if idx == GATH_AT:
        WAITVM(iPOLL)
        A(f"s_mov_b32 s{sCNT}, 0")
        LBL("L_fl_chk")
        A("v_cmp_eq_u32 vcc, 4, v254")
        A("s_cmp_eq_u64 vcc, -1"); A("s_cbranch_scc1 L_fl_ok")
        A(f"s_add_u32 s{sCNT}, s{sCNT}, 1"); A(f"s_cmp_gt_u32 s{sCNT}, {SPIN}"); A("s_cbranch_scc1 L_fl_ok")
        A(f"buffer_load_dword v254, v253, {srd(SRD_DBG)}, 0 offen sc1")
        A("s_waitcnt vmcnt(0)")
        A("s_branch L_fl_chk")
        LBL("L_fl_ok")
        STAMP()
        q_gather(); iG = h_gather()
C("---- q / h frags ----")
WAITVM(iG)
A(f"s_mov_b32 s{sCNT}, 0")
LBL("L_g_chk")
umax_chain(14, list(range(vT, vT+32)) + list(range(vH, vH+32)))
A("v_cmp_eq_u32 vcc, -1, v14")
A("s_cmp_eq_u64 vcc, 0"); A("s_cbranch_scc1 L_g_ok")
A(f"s_add_u32 s{sCNT}, s{sCNT}, 1"); A(f"s_cmp_gt_u32 s{sCNT}, {SPIN}"); A("s_cbranch_scc1 L_g_ok")
sv = vm_issued
q_gather(); h_gather()
vm_issued = sv
A("s_waitcnt vmcnt(0)")
A("s_branch L_g_chk")
LBL("L_g_ok")
STAMP()
for r in range(vT, vT+32):
    dpp_add(r, r, r, "row_ror:4")
for r in range(vT, vT+32):
    dpp_add(r, r, r, "row_ror:8")
for kk in range(4):
    for m in range(4):
        A(f"v_cvt_pk_bf16_f32 v{vQ+4*kk+m}, v{vT+8*kk+2*m}, v{vT+8*kk+2*m+1}")
for e in range(8):
    A(f"v_add_f32 v{vH+e}, v{vH+e}, v{vH+8+e}")
    A(f"v_add_f32 v{vH+16+e}, v{vH+16+e}, v{vH+24+e}")
for e in range(8):
    A(f"v_add_f32 v{vH+e}, v{vH+e}, v{vH+16+e}")
for m in range(4):
    A(f"v_cvt_pk_bf16_f32 v{vH+8+m}, v{vH+2*m}, v{vH+2*m+1}")
for m in range(4):
    A(f"v_lshlrev_b32 v{vH+2*m}, 16, v{vH+8+m}")
    A(f"v_and_b32 v{vH+2*m+1}, 0xffff0000, v{vH+8+m}")
A("s_nop 1")
for e in range(8):
    dpp_op("v_mul_f32", vH+16+e, vH+e, vH+e, "row_ror:8")
for m in range(4):
    A(f"v_cvt_pk_bf16_f32 v{vXF+m}, v{vH+16+2*m}, v{vH+16+2*m+1}")
C("---- QK^T ----")
for kt in range(4):
    for kk in range(4):
        c = "0" if kk == 0 else vr(vS+4*kt)
        A(f"v_mfma_f32_16x16x32_bf16 {vr(vS+4*kt)}, {ar(16*kt+4*kk)}, {vr(vQ+4*kk)}, {c}")
A("s_nop 7"); A("s_nop 1")
A(f"s_mov_b32 s{sT0}, 0x3db504f3")
for m in range(8):
    A(f"v_cvt_pk_bf16_f32 v{vT+m}, v{vS+2*m}, v{vS+2*m+1}")
for m in range(8):
    A(f"v_lshlrev_b32 v{vS+2*m}, 16, v{vT+m}")
    A(f"v_and_b32 v{vS+2*m+1}, 0xffff0000, v{vT+m}")
for k in range(16): A(f"v_mul_f32 v{vS+k}, s{sT0}, v{vS+k}")
for m in range(8):
    A(f"v_cvt_pk_bf16_f32 v{vT+m}, v{vS+2*m}, v{vS+2*m+1}")
for m in range(8):
    A(f"v_lshlrev_b32 v{vS+2*m}, 16, v{vT+m}")
    A(f"v_and_b32 v{vS+2*m+1}, 0xffff0000, v{vT+m}")
A(f"v_max3_f32 v14, v{vS}, v{vS+1}, v{vS+2}")
for k in range(3, 15, 2): A(f"v_max3_f32 v14, v14, v{vS+k}, v{vS+k+1}")
A(f"v_max_f32 v14, v14, v{vS+15}")
A(f"v_and_b32 v15, 3, v{vC}"); A("v_lshlrev_b32 v15, 6, v15")
A(f"v_lshl_add_u32 v255, v{vG}, 2, v15"); A(f"s_lshl_b32 s{sT0}, s{sWAVE}, 4"); A(f"v_add_u32 v255, s{sT0}, v255")
A(f"ds_write_b32 v255, v14 offset:{L_MX}")
A("s_waitcnt lgkmcnt(0)")
A("s_barrier")
for k in range(4): A(f"ds_read_b128 {vr(vT+4*k)}, v15 offset:{L_MX+16*k}")
A("s_waitcnt lgkmcnt(0)")
A(f"v_max3_f32 v14, v{vT}, v{vT+1}, v{vT+2}")
for k in range(3, 15, 2): A(f"v_max3_f32 v14, v14, v{vT+k}, v{vT+k+1}")
A(f"v_max_f32 v14, v14, v{vT+15}")
for k in range(16):
    A(f"v_sub_f32 v{vS+k}, v{vS+k}, v14")
for k in range(16):
    A(f"v_mul_f32 v{vS+k}, s{sLOG2E}, v{vS+k}")
for k in range(16):
    A(f"v_exp_f32 v{vS+k}, v{vS+k}")
A("s_nop 0")
A(f"v_add_f32 v14, v{vS}, v{vS+1}")
for k in range(2, 16): A(f"v_add_f32 v14, v14, v{vS+k}")
A(f"ds_write_b32 v255, v14 offset:{L_LS}")
for m in range(8):
    A(f"v_cvt_pk_bf16_f32 v{vP+m}, v{vS+2*m}, v{vS+2*m+1}")
STAMP()
C("---- PV ----")
for idx in range(QK_AT + 1, 32): topup(idx)
perms(vV, vT)
A("s_nop 1")
for i in range(8):
    A(f"v_mfma_f32_16x16x32_bf16 {vr(vACC+4*i)}, {vr(vT+4*i)}, {vr(vP)}, 0")
for idx in range(32, 40): topup(idx)
STAMP()
perms(vV+32, vT)
A("s_nop 1")
for i in range(8):
    A(f"v_mfma_f32_16x16x32_bf16 {vr(vACC+4*i)}, {vr(vT+4*i)}, {vr(vP+4)}, {vr(vACC+4*i)}")
A(f"v_lshlrev_b32 v12, 9, v{vC}"); A(f"v_lshl_add_u32 v12, v{vG}, 7, v12")
A(f"s_lshl_b32 s{sT0}, s{sWAVE}, 11"); A(f"v_add_u32 v12, s{sT0}, v12")
A(f"v_cmp_gt_u32 vcc, 4, v{vC}")
A("s_nop 4")
A(f"s_and_saveexec_b64 s[{sEX}:{sEX+1}], vcc")
for i in range(8):
    A(f"ds_write_b128 v12, {vr(vACC+4*i)} offset:{L_OR+16*i}")
A(f"s_mov_b64 exec, s[{sEX}:{sEX+1}]")
A("s_waitcnt lgkmcnt(0)")
A("s_barrier")
C("---- publish O (waves 0,1) and ML (wave 2) ----")
A(f"s_cmp_gt_u32 s{sWAVE}, 1"); A("s_cbranch_scc1 L_o_ml")
A("v_lshlrev_b32 v12, 4, v0")
for w in range(4): A(f"ds_read_b128 {vr(vT+4*w)}, v12 offset:{L_OR+2048*w}")
A("s_waitcnt lgkmcnt(0)")
for e in range(4):
    A(f"v_add_f32 v{vT+e}, v{vT+e}, v{vT+4+e}")
    A(f"v_add_f32 v{vT+8+e}, v{vT+8+e}, v{vT+12+e}")
for e in range(4): A(f"v_add_f32 v{vT+e}, v{vT+e}, v{vT+8+e}")
for e in range(4): A(f"v_min_u32 v{vT+e}, -2, v{vT+e}")
A(f"buffer_store_dwordx4 {vr(vT)}, v12, {srd(SRD_WS)}, s{sOST} offen sc1")
A("s_branch L_o_done")
LBL("L_o_ml")
A(f"s_cmp_lg_u32 s{sWAVE}, 2"); A("s_cbranch_scc1 L_o_done")
A(f"v_and_b32 v12, 3, v{vLANE}"); A("v_lshlrev_b32 v12, 6, v12")
for k in range(4): A(f"ds_read_b128 {vr(vT+4*k)}, v12 offset:{L_LS+16*k}")
for k in range(4): A(f"ds_read_b128 {vr(vT+16+4*k)}, v12 offset:{L_MX+16*k}")
A("s_waitcnt lgkmcnt(0)")
A(f"v_add_f32 v15, v{vT}, v{vT+1}")
for k in range(2, 16): A(f"v_add_f32 v15, v15, v{vT+k}")
A(f"v_max3_f32 v14, v{vT+16}, v{vT+17}, v{vT+18}")
for k in range(3, 15, 2): A(f"v_max3_f32 v14, v14, v{vT+16+k}, v{vT+16+k+1}")
A(f"v_max_f32 v14, v14, v{vT+31}")
A("v_min_u32 v14, -2, v14"); A("v_min_u32 v15, -2, v15")
A(f"v_lshlrev_b32 v12, 3, v{vLANE}"); A(f"v_add_u32 v12, 2048, v12"); A(f"v_mov_b32 v{vT}, {OOB}")
A(f"v_cmp_gt_u32 vcc, 4, v{vLANE}"); A("s_nop 1"); A(f"v_cndmask_b32 v12, v{vT}, v12, vcc")
A(f"buffer_store_dwordx2 v[14:15], v12, {srd(SRD_WS)}, s{sOST} offen sc1")
LBL("L_o_done")
STAMP()
C("---- P3 ----")
A(f"s_cmp_eq_u32 s{sROLE}, 0"); A("s_cbranch_scc1 L_final")
A("s_waitcnt vmcnt(0)")
perms(vW, vT)
A(f"s_cmp_eq_u32 s{sROLE}, 2"); A("s_cbranch_scc1 L_p3_mm")
A(f"v_and_b32 v12, 7, v{vC}"); A("v_lshlrev_b32 v12, 17, v12")
A(f"v_lshrrev_b32 v14, 3, v{vC}"); A("v_lshl_add_u32 v12, v14, 13, v12")
A(f"v_lshl_add_u32 v15, v{vG}, 5, v12")
A(f"s_mov_b32 s{sCNT}, 0")
A(f"s_add_u32 s{sT0}, s{sOG}, 4096"); A(f"s_add_u32 s{sT1}, s98, 4096")
LBL("L_og")
go = vV
A(f"buffer_load_dwordx4 {vr(go)}, v15, {srd(SRD_WS)}, s{sOG} offen sc1")
A(f"buffer_load_dwordx4 {vr(go+4)}, v15, {srd(SRD_WS)}, s{sOG} offen offset:16 sc1")
A(f"buffer_load_dwordx4 {vr(go+8)}, v15, {srd(SRD_WS)}, s{sT0} offen sc1")
A(f"buffer_load_dwordx4 {vr(go+12)}, v15, {srd(SRD_WS)}, s{sT0} offen offset:16 sc1")
A(f"buffer_load_dwordx2 {vr(go+16,2)}, v12, {srd(SRD_WS)}, s98 offen sc1")
A(f"buffer_load_dwordx2 {vr(go+18,2)}, v12, {srd(SRD_WS)}, s{sT1} offen sc1")
A("s_waitcnt vmcnt(0)")
umax_chain(14, list(range(go, go+20)))
A("v_cmp_eq_u32 vcc, -1, v14")
A("s_cmp_eq_u64 vcc, 0"); A("s_cbranch_scc1 L_og_ok")
A(f"s_add_u32 s{sCNT}, s{sCNT}, 1"); A(f"s_cmp_gt_u32 s{sCNT}, {SPIN}"); A("s_cbranch_scc0 L_og")
LBL("L_og_ok")
STAMP()
m0, l0, m1, l1 = go+16, go+17, go+18, go+19
tM, tw0, tw1, tL = go+20, go+21, go+22, go+23
A(f"v_max_f32 v{tM}, v{m0}, v{m1}")
A("s_nop 1")
dpp_op("v_max_f32", tM, tM, tM, "row_ror:8")
A(f"v_sub_f32 v{tw0}, v{m0}, v{tM}"); A(f"v_sub_f32 v{tw1}, v{m1}, v{tM}")
A(f"v_mul_f32 v{tw0}, s{sLOG2E}, v{tw0}"); A(f"v_mul_f32 v{tw1}, s{sLOG2E}, v{tw1}")
A(f"v_exp_f32 v{tw0}, v{tw0}"); A(f"v_exp_f32 v{tw1}, v{tw1}")
A("s_nop 0")
A(f"v_mul_f32 v{tL}, v{tw0}, v{l0}"); A(f"v_fmac_f32 v{tL}, v{tw1}, v{l1}")
for e in range(8):
    A(f"v_mul_f32 v{go+e}, v{tw0}, v{go+e}")
for e in range(8):
    A(f"v_fmac_f32 v{go+e}, v{tw1}, v{go+8+e}")
dpp_add(tL, tL, tL, "row_ror:8")
for e in range(8):
    dpp_add(go+e, go+e, go+e, "row_ror:8")
A(f"v_rcp_f32 v{tw0}, v{tL}")
A("s_nop 0")
for e in range(8):
    A(f"v_mul_f32 v{go+8}, v{go+e}, v{tw0}")
    A(f"v_fma_f32 v{go+9}, -v{go+8}, v{tL}, v{go+e}")
    A(f"v_fma_f32 v{go+e}, v{go+9}, v{tw0}, v{go+8}")
for m in range(4):
    A(f"v_cvt_pk_bf16_f32 v{vXF+m}, v{go+2*m}, v{go+2*m+1}")
LBL("L_p3_mm")
A("s_nop 1")
for i in range(8):
    A(f"v_mfma_f32_16x16x32_bf16 {vr(vACC+4*i)}, {vr(vT+4*i)}, {vr(vXF)}, 0")
A(f"v_and_b32 v12, 7, v{vC}"); A("v_lshlrev_b32 v12, 9, v12"); A(f"v_lshl_add_u32 v12, v{vG}, 7, v12")
A(f"s_lshl_b32 s{sT0}, s{sWAVE}, 12"); A(f"v_add_u32 v12, s{sT0}, v12")
A(f"v_cmp_gt_u32 vcc, 8, v{vC}")
A("s_nop 4")
A(f"s_and_saveexec_b64 s[{sEX}:{sEX+1}], vcc")
for i in range(8):
    A(f"ds_write_b128 v12, {vr(vACC+4*i)} offset:{L_R3+16*i}")
A(f"s_mov_b64 exec, s[{sEX}:{sEX+1}]")
A("s_waitcnt lgkmcnt(0)")
A("s_barrier")
A("v_lshlrev_b32 v12, 4, v0")
for w in range(4): A(f"ds_read_b128 {vr(vT+4*w)}, v12 offset:{L_R3+4096*w}")
A("s_waitcnt lgkmcnt(0)")
for e in range(4):
    A(f"v_add_f32 v{vT+e}, v{vT+e}, v{vT+4+e}")
    A(f"v_add_f32 v{vT+8+e}, v{vT+8+e}, v{vT+12+e}")
for e in range(4): A(f"v_add_f32 v{vT+e}, v{vT+e}, v{vT+8+e}")
for e in range(4): A(f"v_min_u32 v{vT+e}, -2, v{vT+e}")
A(f"buffer_store_dwordx4 {vr(vT)}, v5, {srd(SRD_WS)}, s{sP3ST} offen sc1")
STAMP()
C("---- final (wave 0) ----")
LBL("L_final")
A(f"s_cmp_lg_u32 s{sWAVE}, 0"); A("s_cbranch_scc1 L_end")
A(f"s_lshr_b32 s{sT0}, s{sW}, 5"); A(f"s_lshl_b32 s{sT0}, s{sT0}, 11")
A(f"s_and_b32 s{sT1}, s{sW}, 31"); A(f"s_lshl_b32 s{sT2}, s{sT1}, 6"); A(f"s_add_u32 s{sT0}, s{sT0}, s{sT2}"); A(f"s_add_u32 s{sT0}, s{sT0}, {SOUT}")
A(f"s_add_u32 s{sT2}, s{sT0}, {16*16384}"); A(f"s_add_u32 s{sT3}, s{sT0}, {32*16384}")
A(f"v_lshrrev_b32 v12, 2, v{vLANE}"); A("v_lshlrev_b32 v14, 14, v12"); A(f"v_and_b32 v15, 3, v{vLANE}"); A("v_lshl_add_u32 v14, v15, 4, v14")
A(f"v_mov_b32 v16, {OOB}"); A("v_cmp_gt_u32 vcc, 14, v12"); A("s_nop 1"); A("v_cndmask_b32 v16, v16, v14, vcc")
A(f"s_lshr_b32 s{sT4}, s{sW}, 5"); A(f"s_lshl_b32 s{sT4}, s{sT4}, 10")
A(f"s_lshr_b32 s{sT5}, s{sT1}, 1"); A(f"s_lshl_b32 s{sT5}, s{sT5}, 6"); A(f"s_add_u32 s{sT4}, s{sT4}, s{sT5}")
A(f"s_and_b32 s{sT5}, s{sT1}, 1"); A(f"s_lshl_b32 s{sT5}, s{sT5}, 3"); A(f"s_add_u32 s{sT4}, s{sT4}, s{sT5}")
A("v_lshlrev_b32 v17, 1, v15"); A(f"v_add_u32 v17, s{sT4}, v17")
A(f"v_mov_b32 v18, {OOB}"); A(f"v_cmp_gt_u32 vcc, 4, v{vLANE}"); A("s_nop 1"); A("v_cndmask_b32 v17, v18, v17, vcc")
for r in range(4):
    A(f"buffer_load_ushort v{40+r}, v17, {srd(SRD_X)}, 0 offen offset:{16*r}")
A(f"s_mov_b32 s{sCNT}, 0")
LBL("L_fin")
A(f"buffer_load_dwordx4 v[20:23], v14, {srd(SRD_WS)}, s{sT0} offen sc1")
A(f"buffer_load_dwordx4 v[24:27], v14, {srd(SRD_WS)}, s{sT2} offen sc1")
A(f"buffer_load_dwordx4 v[28:31], v16, {srd(SRD_WS)}, s{sT3} offen sc1")
A("s_waitcnt vmcnt(0)")
umax_chain(18, list(range(20, 32)))
A("v_cmp_eq_u32 vcc, -1, v18")
A("s_cmp_eq_u64 vcc, 0"); A("s_cbranch_scc1 L_fin_ok")
A(f"s_add_u32 s{sCNT}, s{sCNT}, 1"); A(f"s_cmp_gt_u32 s{sCNT}, {SPIN}"); A("s_cbranch_scc0 L_fin")
LBL("L_fin_ok")
STAMP()
for e in range(4): A(f"v_add_f32 v{20+e}, v{20+e}, v{24+e}")
for e in range(4): A(f"v_mov_b32 v{24+e}, v{28+e}")
A("s_nop 1")
for r in range(20, 28): dpp_add(r, r, r, "row_ror:4")
for r in range(20, 28): dpp_add(r, r, r, "row_ror:8")
for r in range(20, 28): A(f"ds_swizzle_b32 v{r+8}, v{r} offset:0x401F")
A("s_waitcnt lgkmcnt(0)")
for r in range(20, 28): A(f"v_add_f32 v{r}, v{r}, v{r+8}")
for r in range(20, 28): A(f"v_mov_b32 v{r+8}, v{r}")
A("s_nop 1")
for r in range(20, 28): A(f"v_permlane32_swap_b32 v{r}, v{r+8}")
for r in range(20, 28): A(f"v_add_f32 v{r}, v{r}, v{r+8}")
A("v_cvt_pk_bf16_f32 v28, v20, v21"); A("v_cvt_pk_bf16_f32 v29, v22, v23")
A("v_cvt_pk_bf16_f32 v30, v24, v25"); A("v_cvt_pk_bf16_f32 v31, v26, v27")
for m in range(2):
    A(f"v_lshlrev_b32 v{20+2*m}, 16, v{28+m}"); A(f"v_and_b32 v{21+2*m}, 0xffff0000, v{28+m}")
    A(f"v_lshlrev_b32 v{24+2*m}, 16, v{30+m}"); A(f"v_and_b32 v{25+2*m}, 0xffff0000, v{30+m}")
for e in range(4):
    A(f"v_mul_f32 v{28+e}, s{sLOG2E}, v{24+e}")
for e in range(4):
    A(f"v_exp_f32 v{28+e}, -v{28+e}")
A("s_nop 0")
for e in range(4):
    A(f"v_add_f32 v{28+e}, 1.0, v{28+e}")
for e in range(4):
    A(f"v_rcp_f32 v{32+e}, v{28+e}")
A("s_nop 0")
for e in range(4):
    A(f"v_mul_f32 v36, v{24+e}, v{32+e}")
    A(f"v_fma_f32 v37, -v36, v{28+e}, v{24+e}")
    A(f"v_fma_f32 v{24+e}, v37, v{32+e}, v36")
A("v_cvt_pk_bf16_f32 v30, v24, v25"); A("v_cvt_pk_bf16_f32 v31, v26, v27")
for m in range(2):
    A(f"v_lshlrev_b32 v{24+2*m}, 16, v{30+m}"); A(f"v_and_b32 v{25+2*m}, 0xffff0000, v{30+m}")
for e in range(4): A(f"v_mul_f32 v{20+e}, v{20+e}, v{24+e}")
A("v_cvt_pk_bf16_f32 v28, v20, v21"); A("v_cvt_pk_bf16_f32 v29, v22, v23")
for m in range(2):
    A(f"v_lshlrev_b32 v{20+2*m}, 16, v{28+m}"); A(f"v_and_b32 v{21+2*m}, 0xffff0000, v{28+m}")
for e in range(4):
    A(f"v_lshlrev_b32 v{40+e}, 16, v{40+e}")
    A(f"v_add_f32 v{20+e}, v{20+e}, v{40+e}")
for e in range(4):
    A(f"v_cvt_pk_bf16_f32 v{24+e}, v{20+e}, v{20+e}")
for r in range(4):
    A(f"buffer_store_short v{24+r}, v17, {srd(SRD_OUT)}, 0 offen offset:{16*r}")
STAMP()
LBL("L_end")
A("s_endpgm")
tail = f""".section .rodata,"a"
.p2align 6
.amdhsa_kernel {NAME}_kernel
  .amdhsa_next_free_vgpr 320
  .amdhsa_next_free_sgpr 102
  .amdhsa_accum_offset 256
  .amdhsa_group_segment_fixed_size 0
  .amdhsa_kernarg_size 96
  .amdhsa_user_sgpr_count 2
  .amdhsa_user_sgpr_kernarg_segment_ptr 1
  .amdhsa_system_sgpr_workgroup_id_x 1
.end_amdhsa_kernel
"""
open(OUT, "w").write(hdr + "\n" + "\n".join(L) + "\n" + tail)
print("wrote", OUT, len(L), "lines; stamps:", stamp_i)
```
